```python
import torch

def _softmax(x, axis=-1):
    return torch.softmax(x, dim=axis)
def _gelu(x):
    return torch.nn.functional.gelu(x, approximate="tanh")
def _silu(x):
    return torch.nn.functional.silu(x)
def _sigmoid(x):
    return torch.sigmoid(x)
def _layernorm(x, axis=-1, eps=1e-5):
    m = x.mean(dim=axis, keepdim=True)
    v = x.var(dim=axis, keepdim=True, unbiased=False)
    return (x - m) / torch.sqrt(v + eps)
def _scatter_add(tgt, idx, src, axis=0):
    return tgt.clone().index_add_(axis, idx, src)
def _segment_sum(src, seg, n):
    out = torch.zeros((n,) + src.shape[1:], dtype=src.dtype)
    return out.index_add_(0, seg, src)
def _pad(x, pw):
    flat = tuple(v for pair in reversed(pw) for v in pair)
    return torch.nn.functional.pad(x, flat)

kernel_name = 'parallel_sum__ssm_conv_s4d__dense_activation_relu__prompt'

def setup_inputs():

    _w = (lambda a: (lambda t: t.to(torch.bfloat16) if t.is_floating_point() else t)(torch.as_tensor(a)))
    def _A_setup():
        Bsz, L, D, N = 1, 2048, 640, 128
        return {
            "u": _w((lambda *s: torch.randn(*s, dtype=torch.bfloat16) * 0.05)(Bsz, L, D)),
            "log_A_real": _w((lambda *s: torch.randn(*s, dtype=torch.bfloat16) * 6.4)(D, N) * 0.5),
            "A_imag": _w((lambda *s: torch.randn(*s, dtype=torch.bfloat16) * 0.2)(D, N) * 3.14),
            "C_real": _w((lambda *s: torch.randn(*s, dtype=torch.bfloat16) * 0.8)(D, N) / N ** 0.5),
            "C_imag": _w((lambda *s: torch.randn(*s, dtype=torch.bfloat16) * 0.8)(D, N) / N ** 0.5),
            "log_dt": _w((lambda *s: torch.randn(*s, dtype=torch.bfloat16) * 0.2)(D) * 0.5 - 4.0),
            "D_skip": _w((lambda *s: torch.randn(*s, dtype=torch.bfloat16) * 0.2)(D)),
        }
    _A_in = _A_setup()

    def _B_setup():
        B, S, D, Dff = 1, 2048, 640, 1728
        return {
            "x": _w((lambda *s: torch.randn(*s, dtype=torch.bfloat16) * 0.05)(B, S, D)),
            "w1": _w((lambda *s: torch.randn(*s, dtype=torch.bfloat16) * 0.05)(D, Dff)),
            "w2": _w((lambda *s: torch.randn(*s, dtype=torch.bfloat16) * 0.05)(Dff, D)),
        }
    _B_in = _B_setup()

    return {
        "A_u": _A_in["u"],
        "A_log_A_real": _A_in["log_A_real"],
        "A_A_imag": _A_in["A_imag"],
        "A_C_real": _A_in["C_real"],
        "A_C_imag": _A_in["C_imag"],
        "A_log_dt": _A_in["log_dt"],
        "A_D_skip": _A_in["D_skip"],
        "B_x": _B_in["x"],
        "B_w1": _B_in["w1"],
        "B_w2": _B_in["w2"],
    }

def reference(A_u, A_log_A_real, A_A_imag, A_C_real, A_C_imag, A_log_dt, A_D_skip, B_x, B_w1, B_w2):
    def _A_ref(u, log_A_real, A_imag, C_real, C_imag, log_dt, D_skip):
        L = u.shape[1]
        dt = torch.exp(log_dt)
        A = -torch.exp(log_A_real) + 1j * A_imag
        C = (C_real + 1j * C_imag) * dt[:, None]
        pos = (lambda x, dt: x.to(dt))(torch.arange(L), log_dt.dtype)
        P = torch.exp((A * dt[:, None])[:, :, None] * pos[None, None, :])
        K = 2.0 * torch.einsum("dn,dnl->dl", C, P).real
        L2 = 2 * L
        u_t = (lambda x, *d: x.permute(*d))(u, 0, 2, 1)
        Kf = (lambda x, *a, **k: torch.fft.rfft(x.float(), *a, **k))(K, L2)
        Uf = (lambda x, *a, **k: torch.fft.rfft(x.float(), *a, **k))(u_t, L2)
        y = (lambda x, *a, **k: torch.fft.irfft(x, *a, **k).to(torch.bfloat16))(Uf * Kf[None, :, :], L2)[:, :, :L]
        y = (lambda x, *d: x.permute(*d))(y, 0, 2, 1)
        return y + u * D_skip[None, None, :]

    def _B_ref(x, w1, w2):
        h = torch.einsum("bsd,df->bsf", x, w1)
        zero = torch.zeros_like(h)
        h = torch.maximum(h, zero)
        return torch.einsum("bsf,fd->bsd", h, w2)

    x = A_u
    xn = _layernorm(x, axis=-1)
    return x + _A_ref(xn, A_log_A_real, A_A_imag, A_C_real, A_C_imag, A_log_dt, A_D_skip) + _B_ref(xn, B_w1, B_w2)
```

```python
NAME = "parallel_sum__ssm_conv_s4d__dense_activation_relu__prompt"
class Asm:
    def __init__(self):
        self.lines = []
        self.uid = 0
    def __call__(self, s="", *a):
        for l in s.split("\n"):
            self.lines.append("    " + l.strip() if l.strip() and not l.strip().endswith(":") else l.strip())
    def label(self, n): self.lines.append(n + ":")
    def newlabel(self, p="L"):
        self.uid += 1; return f"{p}_{self.uid}"
    def c(self, s): self.lines.append("    ; " + s)
    def text(self): return "\n".join(self.lines) + "\n"
def vr(a, n=1): return f"v{a}" if n == 1 else f"v[{a}:{a+n-1}]"
def ar(a, n=1): return f"a{a}" if n == 1 else f"a[{a}:{a+n-1}]"
def sr(a, n=1): return f"s{a}" if n == 1 else f"s[{a}:{a+n-1}]"
def header(launch_lines):
    return "\n".join(launch_lines) + '\n.amdgcn_target "amdgcn-amd-amdhsa--gfx950"\n.text\n'
def kernel_open(name):
    return f".globl {name}\n.p2align 8\n.type {name},@function\n{name}:\n"
def descriptor(name, vgpr=512, accum=256, sgpr=102):
    return f""".amdhsa_kernel {name}
  .amdhsa_next_free_vgpr {vgpr}
  .amdhsa_next_free_sgpr {sgpr}
  .amdhsa_accum_offset {accum}
  .amdhsa_group_segment_fixed_size 0
  .amdhsa_kernarg_size 104
  .amdhsa_user_sgpr_count 2
  .amdhsa_user_sgpr_kernarg_segment_ptr 1
  .amdhsa_system_sgpr_workgroup_id_x 1
  .amdhsa_float_denorm_mode_32 3
.end_amdhsa_kernel
"""
RODATA = '.section .rodata,"a"\n.p2align 6\n'
def srd(a, d, base, nbytes):
    a(f"s_mov_b32 s{d}, s{base}")
    a(f"s_and_b32 s{d+1}, s{base+1}, 0xffff")
    a(f"s_mov_b32 s{d+2}, {nbytes}")
    a(f"s_mov_b32 s{d+3}, 0x00020000")
```

```python
import sys, math
from asmlib import *

TS = "--ts" in sys.argv
OUT = [x for x in sys.argv[1:] if not x.startswith("--")][0]

WS_EPOCH = 0
WS_F1 = 0x1000; WS_F2 = 0x2000; WS_F3 = 0x3000
WS_STATS = 0x4000
WS_TS = 0x10000
WS_XT = 0x100000
WS_AT = 0x400000
WS_H = 0x800000
WS_SIZE = 0x1000000
OOB = 0x40000000
STAGE = 30720
L_CONV = 4*STAGE
CONV_SZ = 12896
C_E = 0; C_O = 4160; C_U = 8320; C_T = 8320 + 512
L_LN = L_CONV + 3*CONV_SZ
LDS_SIZE = 163840
SX, SW1, SW2, SWS, SOUT = 32, 36, 40, 44, 48
sWAVE, sMT, sNT, sI2, sJ2, sD, sTAG, sLB = 52, 53, 54, 55, 56, 57, 58, 59
sT = 60
sXO, sWO, sM0X, sM0W, sSLOT, sSTG = 70, 71, 72, 73, 74, 75
sCONV = 76
sQ = 77
sTS = 80
LOG2E = 0x3fb8aa3b
INV2PI = 0x3e22f983

a = Asm()
K = NAME + "_kernel"
nts = [0]
def stamp():
    if not TS: return
    i = nts[0]; nts[0] += 1
    assert i < 11
    a(f"s_memrealtime s[{sTS+2*i}:{sTS+2*i+1}]")

def mfma(d, A, B, c=None):
    a(f"v_mfma_f32_16x16x32_bf16 {d}, {A}, {B}, {c if c is not None else d}")

def poll(vdst, n, voff, soff, label, lanes_mask=None):
    ld = {1: "buffer_load_dword", 2: "buffer_load_dwordx2", 4: "buffer_load_dwordx4"}[n]
    a(f"s_mov_b32 s{sT+9}, 0")
    a.label(label)
    a(f"{ld} {vr(vdst, n)}, v{voff}, s[{SWS}:{SWS+3}], {soff} offen sc1")
    a("s_waitcnt vmcnt(0)")
    a(f"v_cmp_ne_u32 vcc, s{sTAG}, v{vdst}")
    for j in range(1, n):
        a(f"v_cmp_ne_u32 s[{sT+6}:{sT+7}], s{sTAG}, v{vdst+j}")
        a(f"s_or_b64 vcc, vcc, s[{sT+6}:{sT+7}]")
    a(f"s_cbranch_vccz {label}_ok")
    a("s_sleep 4")
    a(f"s_add_u32 s{sT+9}, s{sT+9}, 1")
    a(f"s_cmp_lt_u32 s{sT+9}, 0x200000")
    a(f"s_cbranch_scc1 {label}")
    a.label(label + "_ok")

vLANE = 1
a("s_cmp_ge_u32 s2, 256"); a("s_cbranch_scc1 L_end")
stamp()
a("s_load_dwordx16 s[4:19], s[0:1], 0")
a("s_load_dwordx8 s[20:27], s[0:1], 64")
a("s_load_dwordx2 s[28:29], s[0:1], 96")
a("s_getpc_b64 s[30:31]")
a.label("L_pc")
a(f"s_and_b32 s{sT}, s2, 7")
a(f"s_lshr_b32 s{sT+1}, s2, 3")
a(f"s_lshl_b32 s{sT+2}, s{sT+1}, 10")
a("v_lshlrev_b32 v2, 2, v0")
a(f"v_add_u32 v2, s{sT+2}, v2")
a("v_min_u32 v2, L_code_end-L_pc-4, v2")
a("global_load_dword v255, v2, s[30:31]")
a("v_lshrrev_b32 v3, 6, v0")
a(f"v_and_b32 v{vLANE}, 63, v0")
a(f"v_readfirstlane_b32 s{sWAVE}, v3")
a(f"s_lshr_b32 s{sT+2}, s{sT}, 1"); a(f"s_lshl_b32 s{sT+2}, s{sT+2}, 2"); a(f"s_lshr_b32 s{sT+3}, s{sT+1}, 3")
a(f"s_add_u32 s{sMT}, s{sT+2}, s{sT+3}")
a(f"s_and_b32 s{sT+2}, s{sT}, 1"); a(f"s_lshl_b32 s{sT+2}, s{sT+2}, 3"); a(f"s_and_b32 s{sJ2}, s{sT+1}, 7")
a(f"s_add_u32 s{sNT}, s{sT+2}, s{sJ2}")
a(f"s_lshl_b32 s{sT+2}, s{sT}, 2"); a(f"s_add_u32 s{sI2}, s{sT+2}, s{sT+3}")
a(f"s_lshl_b32 s{sLB}, s{sMT}, 4"); a(f"s_add_u32 s{sLB}, s{sLB}, s{sNT}")
a(f"s_and_b32 s{sQ}, s{sT+1}, 1"); a(f"s_lshr_b32 s{sT+2}, s{sT+1}, 1")
a(f"s_mul_i32 s{sD}, s{sT}, 80"); a(f"s_mul_i32 s{sT+2}, s{sT+2}, 5"); a(f"s_add_u32 s{sD}, s{sD}, s{sT+2}")
a(f"s_mul_i32 s{sT+2}, s{sQ}, 3"); a(f"s_add_u32 s{sT+2}, s{sT+2}, s{sWAVE}")
a(f"s_cmp_ge_u32 s{sWAVE}, 2"); a(f"s_cselect_b32 s{sT+2}, 2, s{sT+2}")
a(f"s_add_u32 s{sD}, s{sD}, s{sT+2}")
a(f"s_min_u32 s{sT+2}, s{sWAVE}, 2"); a(f"s_mul_i32 s{sCONV}, s{sT+2}, {CONV_SZ}"); a(f"s_add_u32 s{sCONV}, s{sCONV}, {L_CONV}")
a("s_waitcnt lgkmcnt(0)")
a(f"s_load_dword s{sTAG}, s[28:29], {WS_EPOCH}")
srd(a, SX, 4, 2048*640*2); srd(a, SW1, 20, 640*1728*2); srd(a, SW2, 22, 1728*640*2)
srd(a, SWS, 28, WS_SIZE); srd(a, SOUT, 24, 2048*640*2)

vP = 8
vLX = 16
a(f"s_cmp_eq_u32 s{sWAVE}, 3"); a("s_cbranch_scc1 L_ld_ln")
a(f"s_lshl_b32 s{sT+2}, s{sD}, 8")
a(f"v_lshlrev_b32 v2, 2, v{vLANE}"); a(f"v_add_u32 v2, s{sT+2}, v2")
a(f"s_lshl_b32 s{sT+2}, s{sD}, 1"); a(f"v_mov_b32 v3, s{sT+2}")
a(f"global_load_dword v{vP}, v2, s[6:7]")
a(f"global_load_dword v{vP+1}, v2, s[8:9]")
a(f"global_load_dword v{vP+2}, v2, s[10:11]")
a(f"global_load_dword v{vP+3}, v2, s[12:13]")
a(f"global_load_ushort v{vP+4}, v3, s[14:15]")
a(f"global_load_ushort v{vP+5}, v3, s[16:17]")
a("s_branch L_ld_done")
a.label("L_ld_ln")
a(f"v_lshrrev_b32 v2, 3, v{vLANE}"); a(f"s_lshl_b32 s{sT+2}, s{sLB}, 3"); a(f"v_add_u32 v2, s{sT+2}, v2")
a("v_mul_u32_u24 v2, 1280, v2"); a(f"v_and_b32 v3, 7, v{vLANE}"); a("v_lshl_add_u32 v2, v3, 4, v2")
for i in range(10):
    a(f"buffer_load_dwordx4 {vr(vLX+4*i,4)}, v2, s[{SX}:{SX+3}], 0 offen offset:{128*i}")
a.label("L_ld_done")

vXA, vWA, vTW, vTX = 240, 244, 248, 249
a(f"s_lshl_b32 s{sT+2}, s{sMT}, 7"); a(f"s_lshl_b32 s{sT+3}, s{sWAVE}, 5"); a(f"s_add_u32 s{sT+2}, s{sT+2}, s{sT+3}")
a(f"v_lshrrev_b32 v2, 3, v{vLANE}"); a(f"v_add_u32 v2, s{sT+2}, v2"); a("v_mul_u32_u24 v2, 1280, v2")
a(f"v_and_b32 v3, 7, v{vLANE}"); a(f"v_lshrrev_b32 v4, 4, v{vLANE}")
for i in range(4):
    a(f"v_add_u32 v5, {4*i}, v4"); a("v_and_b32 v5, 7, v5"); a("v_xor_b32 v5, v3, v5")
    a(f"v_lshl_add_u32 v5, v5, 4, v2"); a(f"v_add_u32 v{vXA+i}, {9216*i}, v5")
a(f"s_mul_i32 s{sT+2}, s{sWAVE}, 224"); a(f"s_mul_i32 s{sT+3}, s{sNT}, 224")
a(f"s_and_b32 s{sT+4}, s{sNT}, 1"); a(f"s_lshl_b32 s{sT+4}, s{sT+4}, 1")
for i in range(4):
    a(f"v_add_u32 v2, s{sT+2}, v{vLANE}")
    if i: a(f"v_add_u32 v2, {64*i}, v2")
    a("v_mul_u32_u24 v3, 4682, v2"); a("v_lshrrev_b32 v3, 16, v3")
    a("v_mul_u32_u24 v4, 14, v3"); a("v_sub_u32 v2, v2, v4")
    a(f"v_add_u32 v2, s{sT+4}, v2"); a("v_subrev_u32 v4, 14, v2"); a("v_min_u32 v2, v2, v4")
    a("v_and_b32 v4, 35, v3"); a("v_bfe_u32 v5, v3, 2, 2"); a("v_lshl_add_u32 v4, v5, 3, v4")
    a("v_bfe_u32 v5, v3, 4, 1"); a("v_lshl_add_u32 v4, v5, 2, v4")
    a("v_mul_u32_u24 v4, 3456, v4"); a("v_lshl_add_u32 v4, v2, 4, v4")
    a(f"v_add_u32 v4, s{sT+3}, v4")
    if i: a(f"v_subrev_u32 v{vWA+i}, {1024*i}, v4")
    else: a(f"v_mov_b32 v{vWA}, v4")
a(f"s_mul_i32 s{sM0W}, s{sWAVE}, 3584")
a(f"s_lshl_b32 s{sM0X}, s{sWAVE}, 12"); a(f"s_add_u32 s{sM0X}, s{sM0X}, 14336")
a(f"s_mov_b32 s{sXO}, 0"); a(f"s_mov_b32 s{sWO}, 0")
def g1_dma(slot_expr_reg=None, slot_const=None):
    if slot_const is not None: a(f"s_add_u32 m0, s{sM0W}, {slot_const}")
    else: a(f"s_add_u32 m0, s{sM0W}, s{slot_expr_reg}")
    a("s_nop 0")
    for i in range(3):
        a(f"buffer_load_dwordx4 v{vWA+i}, s[{SW1}:{SW1+3}], s{sWO} offen offset:{1024*i} lds")
    a("s_mov_b64 exec, 0xffffffff")
    a(f"buffer_load_dwordx4 v{vWA+3}, s[{SW1}:{SW1+3}], s{sWO} offen offset:3072 lds")
    a("s_mov_b64 exec, -1")
    if slot_const is not None: a(f"s_add_u32 m0, s{sM0X}, {slot_const}")
    else: a(f"s_add_u32 m0, s{sM0X}, s{slot_expr_reg}")
    a(f"s_add_u32 s{sWO}, s{sWO}, {64*3456}")
    for i in range(4):
        a(f"buffer_load_dwordx4 v{vXA+i}, s[{SX}:{SX+3}], s{sXO} offen offset:{1024*i} lds")
    a(f"s_add_u32 s{sXO}, s{sXO}, 128")
for s in range(4): g1_dma(slot_const=s*STAGE)
a(f"v_lshrrev_b32 v2, 2, v{vLANE}"); a("v_mul_u32_u24 v2, 224, v2"); a(f"v_and_b32 v3, 3, v{vLANE}")
a(f"v_lshl_add_u32 v{vTW}, v3, 3, v2")
a(f"v_and_b32 v2, 15, v{vLANE}"); a(f"v_lshrrev_b32 v3, 4, v{vLANE}"); a("v_lshrrev_b32 v4, 1, v2")
a("v_xor_b32 v3, v3, v4"); a("v_lshlrev_b32 v2, 7, v2"); a(f"v_add_u32 v2, s{sM0X}, v2")
a(f"v_lshl_add_u32 v{vTX}, v3, 4, v2"); a("v_xor_b32 v3, 4, v3"); a(f"v_lshl_add_u32 v{vTX+1}, v3, 4, v2")
for r in range(84): a(f"v_accvgpr_write_b32 a{r}, 0")
a("s_waitcnt lgkmcnt(0)")
a(f"s_mul_i32 s{sTAG}, s{sTAG}, 0x9E3779B1"); a(f"s_add_u32 s{sTAG}, s{sTAG}, 0x7F4A7C15")
stamp()
a(f"s_cmp_eq_u32 s{sWAVE}, 3"); a("s_cbranch_scc1 L_ln")

def rbf(v, t=None):
    a(f"v_cvt_pk_bf16_f32 v{v}, v{v}, v{v}"); a(f"v_lshlrev_b32 v{v}, 16, v{v}")
def cmul(z, x, y, t):
    a(f"v_pk_mul_f32 {vr(t,2)}, {vr(x,2)}, {vr(y,2)} op_sel:[0,0] op_sel_hi:[1,0]")
    a(f"v_pk_fma_f32 {vr(z,2)}, {vr(x,2)}, {vr(y,2)}, {vr(t,2)} op_sel:[1,1,0] op_sel_hi:[0,1,1] neg_lo:[1,0,0]")
def cmul2(z, x, y, t):
    for m in range(2):
        a(f"v_pk_mul_f32 {vr(t+2*m,2)}, {vr(x+2*m,2)}, {vr(y+2*m,2)} op_sel:[0,0] op_sel_hi:[1,0]")
    for m in range(2):
        a(f"v_pk_fma_f32 {vr(z+2*m,2)}, {vr(x+2*m,2)}, {vr(y+2*m,2)}, {vr(t+2*m,2)} op_sel:[1,1,0] op_sel_hi:[0,1,1] neg_lo:[1,0,0]")
vDT2 = 14; vDSK = 15
vKW = 16
vXR, vPH = 18, 20
vW1, vW8, vW256 = 24, 28, 32
vC = 36; vTM = 40; vPK = 44
vR = 48
a("s_waitcnt vmcnt(32)")
a(f"s_mov_b32 s{sT}, {LOG2E}"); a(f"s_mov_b32 s{sT+1}, {INV2PI}")
a(f"v_lshlrev_b32 v{vP+4}, 16, v{vP+4}"); a(f"v_lshlrev_b32 v251, 16, v{vP+5}")
a(f"v_mul_f32 v{vP+4}, s{sT}, v{vP+4}"); a(f"v_exp_f32 v{vP+4}, v{vP+4}")
a(f"v_lshlrev_b32 v{vXR}, 16, v{vP}"); a(f"v_and_b32 v{vXR+1}, 0xffff0000, v{vP}")
rbf(vP+4)
a(f"v_lshlrev_b32 v{vPH}, 16, v{vP+1}"); a(f"v_and_b32 v{vPH+1}, 0xffff0000, v{vP+1}")
for m in range(2): a(f"v_mul_f32 v{vXR+m}, s{sT}, v{vXR+m}")
for m in range(2): a(f"v_exp_f32 v{vXR+m}, v{vXR+m}")
a(f"v_lshlrev_b32 v{vC}, 16, v{vP+2}"); a(f"v_lshlrev_b32 v{vC+1}, 16, v{vP+3}")
a(f"v_and_b32 v{vC+2}, 0xffff0000, v{vP+2}"); a(f"v_and_b32 v{vC+3}, 0xffff0000, v{vP+3}")
for m in range(2): rbf(vXR+m)
for m in range(2):
    a(f"v_mul_f32 v{vXR+m}, v{vXR+m}, v{vP+4}")
    a(f"v_mul_f32 v{vPH+m}, v{vPH+m}, v{vP+4}")
for m in range(2):
    a(f"v_mul_f32 v{vXR+m}, s{sT}, v{vXR+m}")
    a(f"v_mul_f32 v{vPH+m}, s{sT+1}, v{vPH+m}")
a(f"v_add_f32 v{vDT2}, v{vP+4}, v{vP+4}")
for (dst, P) in ((vW1, 1.0), (vW8, 8.0), (vW256, 256.0)):
    import struct
    lit = hex(struct.unpack("<I", struct.pack("<f", P))[0]); nlit = hex(struct.unpack("<I", struct.pack("<f", -P))[0])
    for m in range(2):
        a(f"v_mul_f32 v{vTM+m}, {nlit}, v{vXR+m}")
        a(f"v_mul_f32 v{vTM+2+m}, {lit}, v{vPH+m}")
    for m in range(2):
        a(f"v_exp_f32 v{vTM+m}, v{vTM+m}")
        a(f"v_fract_f32 v{vTM+2+m}, v{vTM+2+m}")
    for m in range(2):
        a(f"v_cos_f32 v{dst+2*m}, v{vTM+2+m}")
        a(f"v_sin_f32 v{dst+2*m+1}, v{vTM+2+m}")
    a("s_nop 0")
    for m in range(2):
        a(f"v_pk_mul_f32 {vr(dst+2*m,2)}, {vr(dst+2*m,2)}, {vr(vTM,2)} op_sel:[0,{m}] op_sel_hi:[1,{m}]")
KP = 544
a(f"v_lshlrev_b32 v{vKW}, 3, v{vLANE}"); a(f"v_add_u32 v{vKW}, s{sCONV}, v{vKW}")
def kwrite(src, row, neg):
    n = "-" if neg else ""
    a(f"v_cvt_pk_bf16_f32 v{vPK}, v{src}, {n}v{src+1}")
    a(f"v_cvt_pk_bf16_f32 v{vPK+1}, v{src+2}, {n}v{src+3}")
    a(f"ds_write_b64 v{vKW}, {vr(vPK,2)} offset:{row*KP}")
kwrite(vC, 0, True)
cur = vC
for g in range(1, 9):
    nxt = vR + 4*(g & 1)
    cmul2(nxt, cur, vW256, vTM); kwrite(nxt, g, True); cur = nxt
cur = vC
keep = {2: vR+8, 4: vR+12, 6: vR+16}
for p in range(1, 8):
    nxt = keep.get(p, vR)
    cmul2(nxt, cur, vW1, vTM); kwrite(nxt, 8+p, True); cur = nxt
vKR = 17
a(f"v_and_b32 v2, 15, v{vLANE}"); a(f"v_mul_u32_u24 v2, {KP}, v2"); a(f"v_lshrrev_b32 v3, 4, v{vLANE}")
a(f"v_lshl_add_u32 v2, v3, 4, v2"); a(f"v_add_u32 v{vKR}, s{sCONV}, v2")
vRF = 72
vQF = 136; vKD = 168
for s in range(8): a(f"ds_read_b128 {vr(vRF+4*s,4)}, v{vKR} offset:{64*s}")
cmul2(vR+8, vR+8, vW256, vTM); cmul2(vR+12, vR+12, vW256, vTM); cmul2(vR+16, vR+16, vW256, vTM)
cmul2(vR, vR+12, vW256, vTM); cmul2(vR+4, vR, vW256, vTM)
for r, src in enumerate((vR+8, vR+12, vR+16, vR, vR+4)): kwrite(src, r, True)
for s in range(8): a(f"ds_read_b128 {vr(vRF+32+4*s,4)}, v{vKR} offset:{64*s}")
a(f"v_mov_b32 v{vR}, 1.0"); a(f"v_mov_b32 v{vR+1}, 0"); a(f"v_mov_b32 v{vR+2}, 1.0"); a(f"v_mov_b32 v{vR+3}, 0")
cur = vR
for mtile in range(2):
    for k in range(16*mtile, 16*mtile+16):
        if k == 0: pass
        elif k == 1: cur = vW8
        else:
            nxt = vR + 4*(k & 1)
            cmul2(nxt, cur, vW8, vTM); cur = nxt
        kwrite(cur, k - 16*mtile, False)
    for s in range(8): a(f"ds_read_b128 {vr(vQF+4*s,4)}, v{vKR} offset:{64*s}")
    a("s_waitcnt lgkmcnt(0)")
    for s in range(8):
        for nt_ in range(2):
            d = vr(vKD + 8*mtile + 4*nt_, 4)
            mfma(d, vr(vQF+4*s,4), vr(vRF+32*nt_+4*s,4), "0" if s == 0 else None)
a(f"v_and_b32 v2, 15, v{vLANE}"); a(f"v_lshrrev_b32 v3, 4, v{vLANE}"); a("v_lshlrev_b32 v4, 7, v2")
a("v_lshl_add_u32 v4, v3, 4, v4"); a(f"v_add_u32 v4, s{sCONV}, v4")
a("v_cmp_gt_u32 vcc, 5, v2")
a("s_nop 7"); a("s_nop 1")
for r in range(16): a(f"v_mul_f32 v{vKD+r}, v{vDT2}, v{vKD+r}")
for mtile in range(2):
    a(f"ds_write_b128 v4, {vr(vKD+8*mtile,4)} offset:{C_T + 64*mtile}")
a(f"s_and_saveexec_b64 s[{sT}:{sT+1}], vcc")
for mtile in range(2):
    a(f"ds_write_b128 v4, {vr(vKD+8*mtile+4,4)} offset:{C_T + 2048 + 64*mtile}")
a(f"s_mov_b64 exec, s[{sT}:{sT+1}]")
vEA = 18
vEW = 19
vKV = 24
vEO = 36
a(f"v_lshlrev_b32 v{vEA}, 2, v{vLANE}"); a(f"v_add_u32 v{vEA}, s{sCONV}, v{vEA}")
a(f"v_lshlrev_b32 v2, 4, v{vLANE}"); a(f"v_sub_u32 v{vEW}, s{sCONV}, v2"); a(f"v_add_u32 v{vEW}, {4080-3072}, v{vEW}")
a(f"v_and_b32 v5, 31, v{vLANE}"); a(f"v_lshlrev_b32 v5, 2, v5"); a(f"v_add_u32 v5, s{sCONV}, v5")
a(f"v_cmp_gt_u32 vcc, 32, v{vLANE}")
def pack_write(it, Kr):
    for j in range(4): a(f"v_cvt_pk_bf16_f32 v{vEO+j}, v{Kr[7-2*j]}, v{Kr[6-2*j]}")
    for j in range(4): a(f"v_cvt_pk_bf16_f32 v{vEO+4+j}, v{Kr[8-2*j]}, v{Kr[7-2*j]}")
    a(f"ds_write_b128 v{vEW}, {vr(vEO,4)} offset:{C_E + 3072 - 1024*it}")
    a(f"ds_write_b128 v{vEW}, {vr(vEO+4,4)} offset:{C_O + 3072 - 1024*it}")
hi_off = {1: 128, 2: 16*128, 3: 17*128, 4: 17*128, 5: 17*128, 6: 18*128, 7: 128+4}
a("s_waitcnt lgkmcnt(0)")
a(f"ds_read_b32 v{vKV}, v{vEA} offset:{C_T}")
a(f"ds_read_b32 v{vKV+8}, v{vEA} offset:{C_T+4}")
for t in range(1, 8):
    a(f"v_mov_b32 v2, {hi_off[t]}"); a(f"v_mov_b32 v3, {(8+t)*128}")
    a("v_cndmask_b32 v2, v2, v3, vcc"); a("v_add_u32 v2, v5, v2")
    a(f"ds_read_b32 v{vKV+t}, v2 offset:{C_T}")
a(f"ds_read_b32 v{vKV+20}, v{vEA} offset:{C_T+256}")
a(f"ds_read_b32 v{vKV+21}, v{vEA} offset:{C_T+19*128}")
a(f"ds_read_b32 v{vKV+22}, v{vEA} offset:{C_T+260}")
a("s_waitcnt lgkmcnt(3)")
pack_write(0, [vKV+t for t in range(9)])
a(f"v_cvt_pk_bf16_f32 v48, v{vKV}, 0"); a("v_mov_b32 v49, 0"); a("v_mov_b32 v50, 0"); a("v_mov_b32 v51, 0")
a("v_mov_b32 v52, 0"); a("v_mov_b32 v53, 0"); a("v_mov_b32 v54, 0"); a("v_mov_b32 v55, 0")
a(f"v_mov_b32 v2, s{sCONV}")
a("s_mov_b64 exec, 1")
a(f"ds_write_b128 v2, v[48:51] offset:{C_O+4096}")
a(f"ds_write_b128 v2, v[52:55] offset:{C_O+4112}")
a(f"ds_write_b128 v2, v[52:55] offset:{C_E+4096}")
a(f"ds_write_b128 v2, v[52:55] offset:{C_E+4112}")
a("s_mov_b64 exec, -1")
a(f"ds_read_b32 v{vKV}, v{vEA} offset:{C_T+512}")
a(f"ds_read_b32 v{vKV+1}, v{vEA} offset:{C_T+516}")
a(f"ds_read_b32 v{vKV+2}, v{vEA} offset:{C_T+768}")
a(f"ds_read_b32 v{vKV+3}, v{vEA} offset:{C_T+772}")
A_, M_, B_ = vKV+20, vKV+21, vKV+22
a("s_waitcnt lgkmcnt(4)")
pack_write(1, [A_, A_, A_, M_, M_, M_, B_, B_, B_])
a(f"v_and_b32 v2, 1, v{vLANE}"); a("v_cmp_eq_u32 vcc, 0, v2")
a("s_waitcnt lgkmcnt(2)")
for it in (2, 3):
    A_, B_, X_ = vKV+2*(it-2), vKV+2*(it-2)+1, vKV+4
    a(f"v_cndmask_b32 v{X_}, v{B_}, v{A_}, vcc")
    pack_write(it, [A_, A_, A_, A_, X_, B_, B_, B_, B_])
a(f"v_lshlrev_b32 v2, 4, v{vLANE}"); a(f"v_add_u32 v2, s{sCONV}, v2")
a("s_mov_b64 exec, 0x3fffffff")
a(f"ds_write_b128 v2, v[52:55] offset:{C_U}")
a("s_mov_b64 exec, -1")
a("s_branch L_gemm1")

a.label("L_ln")
vF = 56
a("s_waitcnt vmcnt(32)")
for j in range(40):
    a(f"v_lshlrev_b32 v{vF+2*j}, 16, v{vLX+j}"); a(f"v_and_b32 v{vF+2*j+1}, 0xffff0000, v{vLX+j}")
a(f"v_pk_add_f32 v[4:5], {vr(vF,2)}, {vr(vF+2,2)}"); a(f"v_pk_mul_f32 v[6:7], {vr(vF,2)}, {vr(vF,2)}")
a(f"v_pk_add_f32 v[8:9], {vr(vF+4,2)}, {vr(vF+6,2)}"); a(f"v_pk_mul_f32 v[10:11], {vr(vF+2,2)}, {vr(vF+2,2)}")
for j in range(2, 40):
    acc = 6 if j % 2 == 0 else 10
    a(f"v_pk_fma_f32 {vr(acc,2)}, {vr(vF+2*j,2)}, {vr(vF+2*j,2)}, {vr(acc,2)}")
    if j >= 4:
        acc = 4 if j % 2 == 0 else 8
        a(f"v_pk_add_f32 {vr(acc,2)}, {vr(acc,2)}, {vr(vF+2*j,2)}")
a("v_pk_add_f32 v[4:5], v[4:5], v[8:9]"); a("v_pk_add_f32 v[6:7], v[6:7], v[10:11]")
a("v_add_f32 v4, v4, v5"); a("v_add_f32 v6, v6, v7")
for dpp in ("quad_perm:[1,0,3,2]", "quad_perm:[2,3,0,1]", "row_half_mirror"):
    a("s_nop 1")
    a(f"v_add_f32_dpp v4, v4, v4 {dpp} row_mask:0xf bank_mask:0xf")
    a(f"v_add_f32_dpp v6, v6, v6 {dpp} row_mask:0xf bank_mask:0xf")
a(f"s_mov_b32 s{sT}, 0x3acccccd")
a(f"v_mul_f32 v4, s{sT}, v4"); a(f"v_mul_f32 v6, s{sT}, v6")
a("v_fma_f32 v6, -v4, v4, v6"); a("v_max_f32 v6, 0, v6")
rbf(4); rbf(6)
a("v_add_f32 v6, 0x3727c5ac, v6"); rbf(6)
a("v_sqrt_f32 v6, v6"); a("s_nop 0"); rbf(6)
a("v_rcp_f32 v5, v6")
a(f"v_lshrrev_b32 v2, 3, v{vLANE}"); a(f"s_lshl_b32 s{sT}, s{sLB}, 6"); a(f"s_add_u32 s{sT}, s{sT}, {WS_STATS}")
a("v_lshlrev_b32 v2, 3, v2")
a("s_mov_b32 exec_lo, 0x01010101"); a("s_mov_b32 exec_hi, 0x01010101")
a(f"buffer_store_dwordx2 v[4:5], v2, s[{SWS}:{SWS+3}], s{sT} offen sc1")
a("s_mov_b64 exec, -1")
LP = 272
a(f"v_lshrrev_b32 v2, 3, v{vLANE}"); a(f"v_mul_u32_u24 v2, {LP}, v2"); a(f"v_and_b32 v3, 7, v{vLANE}")
a("v_lshl_add_u32 v2, v3, 4, v2"); a(f"v_add_u32 v2, {L_LN}, v2")
a(f"v_bfe_u32 v3, v{vLANE}, 2, 2"); a(f"v_mul_u32_u24 v3, {LP}, v3"); a(f"v_and_b32 v8, 3, v{vLANE}")
a("v_lshl_add_u32 v3, v8, 3, v3"); a(f"v_lshrrev_b32 v8, 4, v{vLANE}"); a("v_lshl_add_u32 v3, v8, 5, v3")
a(f"v_add_u32 v3, {L_LN}, v3")
a(f"v_lshlrev_b32 v8, 4, v{vLANE}")
a(f"s_mul_i32 s{sT}, s{sLB}, 10240"); a(f"s_add_u32 s{sT}, s{sT}, {WS_XT}")
for P in range(5):
    for j in range(8*P, 8*P+8):
        f = vF + 2*j
        a(f"v_pk_add_f32 {vr(f,2)}, {vr(f,2)}, v[4:5] op_sel_hi:[1,0] neg_lo:[0,1] neg_hi:[0,1]")
        a(f"v_cvt_pk_bf16_f32 v{f}, v{f}, v{f+1}")
        a(f"v_and_b32 v{f+1}, 0xffff0000, v{f}"); a(f"v_lshlrev_b32 v{f}, 16, v{f}")
        a(f"v_pk_mul_f32 {vr(f,2)}, {vr(f,2)}, v[4:5] op_sel:[0,1] op_sel_hi:[1,1]")
        a(f"v_cvt_pk_bf16_f32 v{vLX+j}, v{f}, v{f+1}")
    a(f"ds_write_b128 v2, {vr(vLX+8*P,4)}")
    a(f"ds_write_b128 v2, {vr(vLX+8*P+4,4)} offset:128")
    o = 140 + 8*(P & 1)
    for h in range(2):
        a(f"ds_read_b64_tr_b16 {vr(o+4*h,2)}, v3 offset:{128*h}")
        a(f"ds_read_b64_tr_b16 {vr(o+4*h+2,2)}, v3 offset:{128*h + 4*LP}")
    a("s_waitcnt lgkmcnt(0)")
    for h in range(2):
        a(f"buffer_store_dwordx4 {vr(o+4*h,4)}, v8, s[{SWS}:{SWS+3}], s{sT} offen offset:{1024*h} sc1")
    a(f"s_add_u32 s{sT}, s{sT}, 2048")

a.label("L_gemm1")
stamp()
aACC = 0; aCS = 56
aW = [96, 124]
aX = [152, 160]
vONE = 232
for r in range(4): a(f"v_mov_b32 v{vONE+r}, 0x3f803f80")
a(f"s_mov_b32 s{sSTG}, 0"); a(f"s_mov_b32 s{sSLOT}, {3*STAGE}")
def g1_reads(kk):
    L = []
    for rho in range(2): L.append(f"ds_read_b128 {ar(aX[kk]+4*rho,4)}, v{vTX+kk} offset:{2048*rho}")
    for t in range(7):
        for h in range(2): L.append(f"ds_read_b64_tr_b16 {ar(aW[kk]+4*t+2*h,2)}, v{vTW} offset:{7168*kk + 3584*h + 32*t}")
    return L
def g1_mfmas(kk):
    L = []
    for t in range(7):
        for rho in range(2):
            d = ar(aACC + 4*(2*t+rho), 4)
            L.append(f"v_mfma_f32_16x16x32_bf16 {d}, {ar(aW[kk]+4*t,4)}, {ar(aX[kk]+4*rho,4)}, {d}")
    return L
def g1_cs(kk, lab):
    a(f"s_and_b32 s{sT+4}, s{sT+5}, 3"); a(f"s_cmp_eq_u32 s{sT+4}, s{sWAVE}"); a(f"s_cbranch_scc0 {lab}")
    for t in range(7):
        d = ar(aCS+4*t, 4)
        a(f"v_mfma_f32_16x16x32_bf16 {d}, {ar(aW[kk]+4*t,4)}, {vr(vONE,4)}, {d}")
    a.label(lab)
def interleave(m, o):
    i = 0
    n = len(m)
    for j, x in enumerate(m):
        a(x)
        upto = math.ceil(len(o)*(j+1)/max(1, n-2))
        while i < min(upto, len(o)): a(o[i]); i += 1
    while i < len(o): a(o[i]); i += 1
a.label("L_g1_loop")
a(f"s_cmp_ge_u32 s{sSTG}, 8"); a("s_cbranch_scc1 L_g1_tailwait")
a("s_waitcnt vmcnt(16)")
a.label("L_g1_waited")
a("s_barrier")
a(f"s_cmp_eq_u32 s{sSTG}, 0"); a("s_cbranch_scc1 L_g1_first")
interleave(g1_mfmas(1), g1_reads(0))
a(f"s_lshl_b32 s{sT+5}, s{sSTG}, 1"); a(f"s_sub_u32 s{sT+5}, s{sT+5}, 1")
g1_cs(1, "L_g1_cs1")
a(f"s_cmp_ge_u32 s{sSTG}, 7"); a("s_cbranch_scc1 L_g1_nodma")
g1_dma(slot_expr_reg=sSLOT)
a.label("L_g1_nodma")
a(f"s_cmp_eq_u32 s{sSTG}, 3"); a("s_cbranch_scc0 L_g1_noflag")
a(f"s_cmp_eq_u32 s{sWAVE}, 3"); a("s_cbranch_scc0 L_g1_noflag")
a(f"s_lshl_b32 s{sT}, s{sLB}, 2"); a(f"s_add_u32 s{sT}, s{sT}, {WS_F1}")
a(f"v_mov_b32 v2, 0"); a(f"v_mov_b32 v3, s{sTAG}"); a("s_mov_b64 exec, 1")
a(f"buffer_store_dword v3, v2, s[{SWS}:{SWS+3}], s{sT} offen sc1")
a("s_mov_b64 exec, -1")
a.label("L_g1_noflag")
a.label("L_g1_second")
a("s_waitcnt lgkmcnt(0)")
interleave(g1_mfmas(0), g1_reads(1))
a(f"s_lshl_b32 s{sT+5}, s{sSTG}, 1")
g1_cs(0, "L_g1_cs0")
a(f"s_add_u32 s{sSLOT}, s{sSLOT}, {STAGE}"); a(f"s_cmp_eq_u32 s{sSLOT}, {4*STAGE}"); a(f"s_cselect_b32 s{sSLOT}, 0, s{sSLOT}")
a(f"s_movk_i32 s{sT+1}, {STAGE}")
a(f"s_cmp_eq_u32 s{sSLOT}, {3*STAGE}"); a(f"s_cselect_b32 s{sT}, {-3*STAGE & 0xffffffff}, s{sT+1}")
a("s_waitcnt lgkmcnt(0)")
for r in (vTW, vTX, vTX+1): a(f"v_add_u32 v{r}, s{sT}, v{r}")
a(f"s_add_u32 s{sSTG}, s{sSTG}, 1"); a(f"s_cmp_lt_u32 s{sSTG}, 10"); a("s_cbranch_scc1 L_g1_loop")
a("s_branch L_g1_done")
a.label("L_g1_tailwait")
a(f"s_cmp_eq_u32 s{sSTG}, 8"); a("s_cbranch_scc0 L_g1_tw9")
a("s_waitcnt vmcnt(8)"); a("s_branch L_g1_waited")
a.label("L_g1_tw9"); a("s_waitcnt vmcnt(0)"); a("s_branch L_g1_waited")
a.label("L_g1_first")
for x in g1_reads(0): a(x)
a("s_branch L_g1_second")
a.label("L_g1_done")
for x in g1_mfmas(1): a(x)
a(f"s_mov_b32 s{sT+5}, 19")
g1_cs(1, "L_g1_cs2")
stamp()

a(f"v_lshlrev_b32 v2, 4, v{vLANE}")
a(f"v_add_u32 v2, {WS_F1}, v2")
poll(4, 4, 2, "0", "L_poll1")
a(f"s_or_b32 s{sT}, s2, s{sWAVE}"); a(f"s_cmp_eq_u32 s{sT}, 0"); a("s_cbranch_scc0 L_noepoch")
a(f"v_mov_b32 v2, {WS_EPOCH}"); a(f"v_mov_b32 v3, s{sTAG}"); a("s_mov_b64 exec, 1")
a(f"buffer_store_dword v3, v2, s[{SWS}:{SWS+3}], 0 offen sc1")
a("s_mov_b64 exec, -1")
a.label("L_noepoch")
a(f"s_lshl_b32 s{sT}, s{sMT}, 10"); a(f"s_lshl_b32 s{sT+1}, s{sWAVE}, 8"); a(f"s_add_u32 s{sT}, s{sT}, s{sT+1}")
a(f"s_add_u32 s{sT}, s{sT}, {WS_STATS}")
a(f"v_and_b32 v2, 15, v{vLANE}"); a("v_lshlrev_b32 v2, 3, v2")
vST = 4
for rho in range(2):
    a(f"buffer_load_dwordx2 {vr(vST+2*rho,2)}, v2, s[{SWS}:{SWS+3}], s{sT} offen offset:{128*rho} sc1")
a(f"s_cmp_eq_u32 s{sWAVE}, 3"); a("s_cbranch_scc1 L_nou")
a(f"v_mul_u32_u24 v3, 10240, v{vLANE}")
a(f"s_lshl_b32 s{sT}, s{sD}, 4"); a(f"s_add_u32 s{sT}, s{sT}, {WS_XT}")
for i in range(4):
    a(f"s_add_u32 m0, s{sCONV}, {C_U + 480 + 1024*i}")
    a("s_nop 0")
    a(f"buffer_load_dwordx4 v3, s[{SWS}:{SWS+3}], s{sT} offen sc1 lds")
    a(f"s_add_u32 s{sT}, s{sT}, {64*10240}")
a.label("L_nou")
vCS = 16
a(f"v_lshrrev_b32 v3, 4, v{vLANE}"); a("v_lshlrev_b32 v3, 4, v3"); a(f"v_add_u32 v3, {L_LN}, v3")
a(f"s_mul_i32 s{sT}, s{sWAVE}, 448"); a(f"v_add_u32 v8, s{sT}, v3")
a("s_mov_b32 exec_lo, 0x00010001"); a("s_mov_b32 exec_hi, 0x00010001")
for t in range(7): a(f"ds_write_b128 v8, {ar(aCS+4*t,4)} offset:{64*t}")
a("s_mov_b64 exec, -1")
a("s_waitcnt lgkmcnt(0)")
a("s_barrier")
vC2 = 44
for w in range(4):
    for t in range(7):
        dst = vCS + 28*w + 4*t
        a(f"ds_read_b128 {vr(dst,4)}, v3 offset:{448*w + 64*t}")
vW2A = 240
a(f"s_mul_i32 s{sT+3}, s{sJ2}, 160")
for i in range(5):
    a(f"v_add_u32 v9, {64*i}, v{vLANE}")
    a("v_mul_u32_u24 v10, 6554, v9"); a("v_lshrrev_b32 v10, 16, v10")
    a("v_mul_u32_u24 v11, 10, v10"); a("v_sub_u32 v9, v9, v11")
    a("v_mul_u32_u24 v10, 1280, v10"); a("v_lshl_add_u32 v10, v9, 4, v10")
    a(f"v_add_u32 v10, s{sT+3}, v10")
    a(f"v_subrev_u32 v{vW2A+i}, {1024*(i%4)}, v10")
sW2O, sRING = 70, 71
a(f"s_mul_i32 s{sW2O}, s{sWAVE}, {14*32*1280}"); a(f"s_mul_i32 s{sRING}, s{sWAVE}, {STAGE}")
def w2_dma(slot):
    a(f"s_add_u32 m0, s{sRING}, {slot*5120}"); a("s_nop 0")
    for i in range(4): a(f"buffer_load_dwordx4 v{vW2A+i}, s[{SW2}:{SW2+3}], s{sW2O} offen offset:{1024*i} lds")
    a(f"s_add_u32 m0, s{sRING}, {slot*5120+4096}"); a("s_nop 0")
    a(f"buffer_load_dwordx4 v{vW2A+4}, s[{SW2}:{SW2+3}], s{sW2O} offen lds")
    a(f"s_add_u32 s{sW2O}, s{sW2O}, {32*1280}")
a("s_waitcnt vmcnt(0)")
for sl in range(6): w2_dma(sl)
a("s_waitcnt lgkmcnt(0)")
for j in range(0, 28, 2):
    a(f"v_pk_add_f32 {vr(vCS+j,2)}, {vr(vCS+j,2)}, {vr(vCS+28+j,2)}")
    a(f"v_pk_add_f32 {vr(vCS+56+j,2)}, {vr(vCS+56+j,2)}, {vr(vCS+84+j,2)}")
for j in range(0, 28, 2):
    a(f"v_pk_add_f32 {vr(vCS+j,2)}, {vr(vCS+j,2)}, {vr(vCS+56+j,2)}")
a(f"s_lshl_b32 s{sT}, s{sMT}, 3"); a(f"s_lshl_b32 s{sT+1}, s{sWAVE}, 1"); a(f"s_add_u32 s{sT}, s{sT}, s{sT+1}")
a(f"s_mul_i32 s{sT}, s{sT}, {56*1024}"); a(f"s_add_u32 s{sT}, s{sT}, {WS_H}")
a(f"s_mul_i32 s{sT+1}, s{sNT}, 7"); a(f"s_and_b32 s{sT+2}, s{sNT}, 1")
a(f"s_add_u32 s{sT+3}, s{sT+1}, s{sT+2}"); a(f"s_lshl_b32 s{sT+3}, s{sT+3}, 9")
a(f"s_add_u32 s{sT+3}, s{sT+3}, s{sT}")
a(f"s_cmp_eq_u32 s{sT+2}, 0"); a(f"s_cselect_b32 s{sT+4}, 6, -1"); a(f"s_add_u32 s{sT+4}, s{sT+4}, s{sT+1}")
a(f"s_lshl_b32 s{sT+4}, s{sT+4}, 9"); a(f"s_lshl_b32 s{sT+2}, s{sT+2}, 3"); a(f"s_add_u32 s{sT+4}, s{sT+4}, s{sT+2}")
a(f"s_add_u32 s{sT+4}, s{sT+4}, s{sT}")
a(f"v_lshlrev_b32 v2, 4, v{vLANE}")
vHT = 48; vHO = 64
for rho in range(2):
    for t in range(7):
        for r in range(4): a(f"v_accvgpr_read_b32 v{vHT+r}, a{aACC+4*(2*t+rho)+r}")
        for r in (0, 2):
            a(f"v_pk_fma_f32 {vr(vHT+r,2)}, {vr(vCS+4*t+r,2)}, {vr(vST+2*rho,2)}, {vr(vHT+r,2)} op_sel_hi:[1,0,1] neg_lo:[1,0,0] neg_hi:[1,0,0]")
        for r in (0, 2):
            a(f"v_pk_mul_f32 {vr(vHT+r,2)}, {vr(vHT+r,2)}, {vr(vST+2*rho,2)} op_sel:[0,1] op_sel_hi:[1,1]")
        o = vHO + 16*rho + 2*t
        a(f"v_cvt_pk_bf16_f32 v{o}, v{vHT}, v{vHT+1}"); a(f"v_cvt_pk_bf16_f32 v{o+1}, v{vHT+2}, v{vHT+3}")
        a(f"v_pk_max_i16 v{o}, v{o}, 0"); a(f"v_pk_max_i16 v{o+1}, v{o+1}, 0")
        if t % 2 == 1:
            a(f"buffer_store_dwordx4 {vr(o-2,4)}, v2, s[{SWS}:{SWS+3}], s{sT+3} offen offset:{1024*(t//2)} sc1")
    a(f"buffer_store_dwordx2 {vr(vHO+16*rho+12,2)}, v2, s[{SWS}:{SWS+3}], s{sT+4} offen sc1")
    if rho == 0:
        a(f"s_add_u32 s{sT+3}, s{sT+3}, {56*1024}"); a(f"s_add_u32 s{sT+4}, s{sT+4}, {56*1024}")
stamp()
def hflag():
    a("s_waitcnt vmcnt(0)")
    a(f"s_lshl_b32 s{sT}, s{sMT}, 8"); a(f"s_lshl_b32 s{sT+1}, s{sWAVE}, 6"); a(f"s_add_u32 s{sT}, s{sT}, s{sT+1}")
    a(f"s_lshl_b32 s{sT+1}, s{sNT}, 2"); a(f"s_add_u32 s{sT}, s{sT}, s{sT+1}"); a(f"s_add_u32 s{sT}, s{sT}, {WS_F2}")
    a(f"v_mov_b32 v2, 0"); a(f"v_mov_b32 v3, s{sTAG}"); a("s_mov_b64 exec, 1")
    a(f"buffer_store_dword v3, v2, s[{SWS}:{SWS+3}], s{sT} offen sc1")
    a("s_mov_b64 exec, -1")

a(f"s_add_u32 s{sT}, s{sWAVE}, s{sQ}"); a(f"s_cmp_ge_u32 s{sWAVE}, 2"); a(f"s_cselect_b32 s{sT}, s{sT}, 0")
a(f"s_cmp_ge_u32 s{sT}, 3"); a("s_cbranch_scc0 L_conv")
hflag()
a("s_branch L_gemm2")
a.label("L_conv")
vCA = 8
vCB = 12
a(f"v_and_b32 v2, 15, v{vLANE}"); a(f"v_lshrrev_b32 v3, 4, v{vLANE}"); a("v_and_b32 v4, 1, v2")
a(f"v_mul_u32_u24 v5, {C_O - C_E + 2}, v4")
a("v_lshlrev_b32 v6, 1, v2"); a("v_add_u32 v5, v5, v6")
a("v_lshlrev_b32 v6, 4, v3"); a("v_sub_u32 v5, v6, v5")
a(f"v_add_u32 v5, s{sCONV}, v5")
for j in range(4): a(f"v_add_u32 v{vCA+j}, {C_O + 2*(2048-16) - 3584 + 1024*j}, v5")
a("v_lshlrev_b32 v5, 5, v2"); a("v_lshl_add_u32 v5, v3, 4, v5"); a(f"v_add_u32 v5, s{sCONV}, v5")
a(f"v_add_u32 v{vCB}, {C_U + 480 - 32}, v5")
aY = 0
cA = [16, 80]; cB = [48, 112]
def cv_reads(p):
    L = []
    for ii in range(8):
        L.append(f"ds_read_b128 {vr(cB[p]+4*ii,4)}, v{vCB} offset:{512*ii}")
        iip = 7 - ii
        o = 128*(iip & 1)
        L.append(f"ds_read2_b32 {vr(cA[p]+4*ii,2)}, v{vCA+iip//2} offset0:{o} offset1:{o+1}")
        L.append(f"ds_read2_b32 {vr(cA[p]+4*ii+2,2)}, v{vCA+iip//2} offset0:{o+2} offset1:{o+3}")
    return L
def cv_adv():
    return [f"v_subrev_u32 v{r}, 64, v{r}" for r in (vCA, vCA+1, vCA+2, vCA+3, vCB)]
def cv_mfmas(p):
    L = []
    for s in range(8):
        for ii in range(8):
            kk = s
            if ii + kk <= 7:
                d = ar(aY+4*(ii+kk), 4)
                L.append(f"v_mfma_f32_16x16x32_bf16 {d}, {vr(cA[p]+4*ii,4)}, {vr(cB[p]+4*kk,4)}, {d}")
    return L
for r in range(32): a(f"v_accvgpr_write_b32 a{aY+r}, 0")
for x in cv_reads(0): a(x)
for x in cv_adv(): a(x)
a(f"s_mov_b32 s{sSTG}, 0")
a.label("L_cv_loop")
a("s_waitcnt lgkmcnt(0)")
interleave(cv_mfmas(0), cv_reads(1) + cv_adv())
a("s_waitcnt lgkmcnt(0)")
interleave(cv_mfmas(1), cv_reads(0) + cv_adv())
a(f"s_cmp_eq_u32 s{sSTG}, 1"); a("s_cbranch_scc0 L_cv_nf")
hflag()
a.label("L_cv_nf")
a(f"s_add_u32 s{sSTG}, s{sSTG}, 1"); a(f"s_cmp_lt_u32 s{sSTG}, 4"); a("s_cbranch_scc1 L_cv_loop")
a(f"v_and_b32 v2, 15, v{vLANE}"); a(f"v_lshrrev_b32 v3, 4, v{vLANE}")
a("v_lshlrev_b32 v2, 5, v2"); a("v_lshl_add_u32 v2, v3, 3, v2"); a(f"v_add_u32 v2, s{sCONV}, v2")
a("s_waitcnt lgkmcnt(0)")
for tau in range(8): a(f"ds_read_b64 {vr(16+2*tau,2)}, v2 offset:{C_U+480+512*tau}")
a("s_nop 7")
a("v_mov_b32 v252, v251")
for tau in range(8):
    if tau == 0: a("s_waitcnt lgkmcnt(0)")
    u = 16+2*tau
    for r in range(4): a(f"v_accvgpr_read_b32 v{40+r}, a{aY+4*tau+r}")
    a(f"v_lshlrev_b32 v44, 16, v{u}"); a(f"v_and_b32 v45, 0xffff0000, v{u}")
    a(f"v_lshlrev_b32 v46, 16, v{u+1}"); a(f"v_and_b32 v47, 0xffff0000, v{u+1}")
    a(f"v_mul_f32 v44, v251, v44"); a(f"v_mul_f32 v45, v251, v45"); a(f"v_mul_f32 v46, v251, v46"); a(f"v_mul_f32 v47, v251, v47")
    a("v_cvt_pk_bf16_f32 v40, v40, v41"); a("v_cvt_pk_bf16_f32 v42, v42, v43")
    a("v_cvt_pk_bf16_f32 v44, v44, v45"); a("v_cvt_pk_bf16_f32 v46, v46, v47")
    for r in (40, 42, 44, 46):
        a(f"v_and_b32 v{r+1}, 0xffff0000, v{r}"); a(f"v_lshlrev_b32 v{r}, 16, v{r}")
    a("v_pk_add_f32 v[40:41], v[40:41], v[44:45]"); a("v_pk_add_f32 v[42:43], v[42:43], v[46:47]")
    a(f"v_cvt_pk_bf16_f32 v{u}, v40, v41"); a(f"v_cvt_pk_bf16_f32 v{u+1}, v42, v43")
    a(f"ds_write_b64 v2, {vr(u,2)} offset:{C_U+480+512*tau}")
a(f"v_lshlrev_b32 v3, 4, v{vLANE}"); a(f"v_add_u32 v2, s{sCONV}, v3")
for i in range(4): a(f"ds_read_b128 {vr(48+4*i,4)}, v2 offset:{C_U+480+1024*i}")
a(f"s_lshl_b32 s{sT}, s{sD}, 12"); a(f"s_add_u32 s{sT}, s{sT}, {WS_AT}")
a("s_waitcnt lgkmcnt(0)")
for i in range(4): a(f"buffer_store_dwordx4 {vr(48+4*i,4)}, v3, s[{SWS}:{SWS+3}], s{sT} offen offset:{1024*i} sc1")
a("s_waitcnt vmcnt(0)")
a(f"s_lshl_b32 s{sT}, s{sD}, 2"); a(f"s_add_u32 s{sT}, s{sT}, {WS_F3}")
a(f"v_mov_b32 v2, 0"); a(f"v_mov_b32 v3, s{sTAG}"); a("s_mov_b64 exec, 1")
a(f"buffer_store_dword v3, v2, s[{SWS}:{SWS+3}], s{sT} offen sc1")
a("s_mov_b64 exec, -1")

a.label("L_gemm2")
stamp()
aO = 0
aW2 = [80, 100]
HD = 7
vH = 16
vXF = 128
vT2 = 8
for r in range(80): a(f"v_accvgpr_write_b32 a{aO+r}, 0")
a(f"s_lshl_b32 s{sT}, s{sI2}, 6"); a(f"s_lshl_b32 s{sT+1}, s{sWAVE}, 4"); a(f"s_add_u32 s{sT}, s{sT}, s{sT+1}")
a(f"s_mul_i32 s{sT}, s{sT}, 1280"); a(f"s_mul_i32 s{sT+1}, s{sJ2}, 160"); a(f"s_add_u32 s72, s{sT}, s{sT+1}")
a(f"v_and_b32 v2, 15, v{vLANE}"); a("v_mul_u32_u24 v2, 1280, v2"); a(f"v_lshrrev_b32 v3, 4, v{vLANE}"); a("v_lshl_add_u32 v2, v3, 3, v2")
for t in range(5): a(f"buffer_load_dwordx2 {vr(vXF+2*t,2)}, v2, s[{SX}:{SX+3}], s72 offen offset:{32*t}")
a(f"v_lshrrev_b32 v2, 2, v{vLANE}"); a("v_mul_u32_u24 v2, 160, v2"); a(f"v_and_b32 v3, 3, v{vLANE}")
a(f"v_lshl_add_u32 v2, v3, 3, v2"); a(f"v_add_u32 v{vT2}, s{sRING}, v2")
a(f"s_lshl_b32 s{sT}, s{sI2}, 7"); a(f"s_add_u32 s{sT}, s{sT}, {WS_F2}")
a(f"v_and_b32 v2, 31, v{vLANE}"); a("v_lshlrev_b32 v2, 2, v2")
poll(4, 1, 2, f"s{sT}", "L_poll2")
stamp()
sH0 = 73
a(f"s_mul_i32 s{sT}, s{sI2}, {4*56*1024}"); a(f"s_mul_i32 s{sT+1}, s{sWAVE}, {14*1024}"); a(f"s_add_u32 s{sT}, s{sT}, s{sT+1}")
for lam in range(4): a(f"s_add_u32 s{sH0+lam}, s{sT}, {WS_H + lam*56*1024}")
a(f"s_cmp_eq_u32 s{sWAVE}, 3"); a(f"s_cselect_b32 s77, {OOB}, 0")
vHA = 9
a(f"v_lshlrev_b32 v{vHA}, 4, v{vLANE}")
def h_loads(step):
    L = []
    for lam in range(4):
        L.append(f"buffer_load_dwordx4 {vr(vH+16*(step%HD)+4*lam,4)}, v{vHA}, s[{SWS}:{SWS+3}], s{sH0+lam} offen offset:{1024*(step%4)} sc1")
    if step % 4 == 3:
        L.append(f"v_add_u32 v{vHA}, 4096, v{vHA}")
        if step == 11: L.append(f"v_add_u32 v{vHA}, s77, v{vHA}")
    return L
def w2_reads(step):
    p = step & 1; L = []
    for t in range(5):
        for h in range(2):
            L.append(f"ds_read_b64_tr_b16 {ar(aW2[p]+4*t+2*h,2)}, v{vT2} offset:{5120*(step%6) + 2560*h + 32*t}")
    return L
def g2_mfmas(step):
    p = step & 1; L = []
    for t in range(5):
        for lam in range(4):
            d = ar(aO+4*(4*t+lam), 4)
            L.append(f"v_mfma_f32_16x16x32_bf16 {d}, {ar(aW2[p]+4*t,4)}, {vr(vH+16*(step%HD)+4*lam,4)}, {d}")
    return L
vmq = []
def vm(tag, n): vmq.extend([tag]*n)
def vmwait(tag):
    idx = max(i for i, t in enumerate(vmq) if t == tag)
    n = len(vmq) - 1 - idx
    a(f"s_waitcnt vmcnt({min(n,63)})")
for s in range(HD):
    for x in h_loads(s): a(x)
    vm(("h", s), 4)
for x in w2_reads(0): a(x)
for s in range(14):
    if s+1 < 14 and s+1 >= 6: vmwait(("w", s+1))
    vmwait(("h", s))
    a("s_waitcnt lgkmcnt(0)")
    oth = w2_reads(s+1) if s+1 < 14 else []
    interleave(g2_mfmas(s), oth)
    if s+6 < 14:
        w2_dma(s % 6); vm(("w", s+6), 5)
    if s+HD < 14:
        for x in h_loads(s+HD): a(x)
        vm(("h", s+HD), 4)
    if s == 11:
        a(f"s_mul_i32 s{sT}, s{sJ2}, 320"); a(f"s_add_u32 s{sT}, s{sT}, {WS_F3}")
        a(f"v_min_u32 v2, 39, v{vLANE}"); a("v_lshlrev_b32 v2, 3, v2")
        poll(4, 2, 2, f"s{sT}", "L_poll3")
        vmq.clear(); vm(("h", 12), 1); vm(("h", 13), 1); vm(("w", 12), 1); vm(("w", 13), 1)
        a(f"s_mul_i32 s{sT}, s{sJ2}, 80"); a(f"s_mul_i32 s{sT+1}, s{sWAVE}, 20"); a(f"s_add_u32 s{sT}, s{sT}, s{sT+1}")
        a(f"s_lshl_b32 s{sT}, s{sT}, 12"); a(f"s_lshl_b32 s{sT+1}, s{sI2}, 7"); a(f"s_add_u32 s{sT}, s{sT}, s{sT+1}")
        a(f"s_add_u32 s{sT}, s{sT}, {WS_AT}")
        a(f"v_lshrrev_b32 v2, 3, v{vLANE}"); a("v_lshlrev_b32 v2, 12, v2"); a(f"v_and_b32 v3, 7, v{vLANE}"); a("v_lshl_add_u32 v2, v3, 4, v2")
        for i in range(3):
            a(f"s_add_u32 m0, s{sRING}, {25600 + 1024*i}")
            if i == 2: a("s_mov_b64 exec, 0xffffffff")
            else: a("s_nop 0")
            a(f"buffer_load_dwordx4 v2, s[{SWS}:{SWS+3}], s{sT} offen sc1 lds")
            a(f"s_add_u32 s{sT}, s{sT}, {8*4096}")
        a("s_mov_b64 exec, -1")
        vm("aT", 3)
stamp()
a(f"v_lshlrev_b32 v2, 4, v{vLANE}"); a(f"v_add_u32 v3, s{sRING}, v2")
a("s_nop 7"); a("s_nop 1")
vOWN = 16
for w in range(4):
    a(f"s_cmp_eq_u32 s{sWAVE}, {w}"); a(f"s_cbranch_scc0 L_red{w}")
    for rel in range(1, 4):
        lam = (w + rel) % 4
        for t in range(5): a(f"ds_write_b128 v3, {ar(aO+4*(4*t+lam),4)} offset:{5120*(rel-1) + 1024*t}")
    for t in range(5):
        for r in range(4): a(f"v_accvgpr_read_b32 v{vOWN+4*t+r}, a{aO+4*(4*t+w)+r}")
    a.label(f"L_red{w}")
for rel in range(1, 4):
    a(f"s_sub_u32 s{sT}, s{sWAVE}, {rel}"); a(f"s_and_b32 s{sT}, s{sT}, 3"); a(f"s_mul_i32 s{sT}, s{sT}, {STAGE}")
    a(f"v_add_u32 v{3+rel}, s{sT}, v2")
a(f"v_lshrrev_b32 v7, 4, v{vLANE}"); a(f"v_bfe_u32 v8, v{vLANE}, 2, 2"); a(f"v_and_b32 v9, 3, v{vLANE}")
a("v_lshlrev_b32 v8, 7, v8"); a("v_lshl_add_u32 v8, v9, 3, v8"); a(f"s_lshl_b32 s{sT}, s{sWAVE}, 5"); a(f"v_add_u32 v8, s{sT}, v8")
for t in range(5):
    a(f"v_add_u32 v9, {4*t}, v7"); a("v_mul_u32_u24 v15, 52, v9"); a("v_lshrrev_b32 v15, 8, v15")
    a(f"v_mul_u32_u24 v15, {STAGE - 5*512}, v15"); a("v_lshl_add_u32 v15, v9, 9, v15"); a(f"v_add_u32 v{10+t}, v15, v8")
a("s_waitcnt vmcnt(0) lgkmcnt(0)")
a("s_barrier")
vPT = 40
for rel in range(1, 4):
    for t in range(5): a(f"ds_read_b128 {vr(vPT+20*(rel-1)+4*t,4)}, v{3+rel} offset:{5120*(rel-1)+1024*t}")
vAT = 100
for t in range(5): a(f"ds_read_b64_tr_b16 {vr(vAT+2*t,2)}, v{10+t} offset:25600")
a(f"v_and_b32 v2, 15, v{vLANE}"); a("v_mul_u32_u24 v2, 160, v2"); a("v_lshl_add_u32 v2, v7, 3, v2"); a(f"v_add_u32 v2, s{sRING}, v2")
a("s_waitcnt lgkmcnt(0)")
for t in range(5):
    o = vOWN + 4*t
    for r in (0, 2):
        a(f"v_pk_add_f32 {vr(o+r,2)}, {vr(o+r,2)}, {vr(vPT+4*t+r,2)}")
        a(f"v_pk_add_f32 {vr(vPT+20+4*t+r,2)}, {vr(vPT+20+4*t+r,2)}, {vr(vPT+40+4*t+r,2)}")
    for r in (0, 2):
        a(f"v_pk_add_f32 {vr(o+r,2)}, {vr(o+r,2)}, {vr(vPT+20+4*t+r,2)}")
    for hh in range(2):
        xr = vXF+2*t+hh; at = vAT+2*t+hh
        a(f"v_lshlrev_b32 v112, 16, v{xr}"); a(f"v_and_b32 v113, 0xffff0000, v{xr}")
        a(f"v_lshlrev_b32 v114, 16, v{at}"); a(f"v_and_b32 v115, 0xffff0000, v{at}")
        a("v_pk_add_f32 v[112:113], v[112:113], v[114:115]")
        a(f"v_cvt_pk_bf16_f32 v114, v{o+2*hh}, v{o+2*hh+1}"); a("v_cvt_pk_bf16_f32 v112, v112, v113")
        a("v_and_b32 v115, 0xffff0000, v114"); a("v_lshlrev_b32 v114, 16, v114")
        a("v_and_b32 v113, 0xffff0000, v112"); a("v_lshlrev_b32 v112, 16, v112")
        a("v_pk_add_f32 v[112:113], v[112:113], v[114:115]")
        a(f"v_cvt_pk_bf16_f32 v{116+hh}, v112, v113")
    a(f"ds_write_b64 v2, v[116:117] offset:{15360 + 32*t}")
a(f"v_lshlrev_b32 v3, 4, v{vLANE}"); a(f"v_add_u32 v3, s{sRING}, v3")
for i in range(3): a(f"ds_read_b128 {vr(120+4*i,4)}, v3 offset:{15360+1024*i}")
for i in range(3):
    a(f"v_add_u32 v9, {64*i}, v{vLANE}")
    a("v_mul_u32_u24 v10, 6554, v9"); a("v_lshrrev_b32 v10, 16, v10")
    a(f"v_mul_u32_u24 v10, {1280-160}, v10"); a(f"v_lshl_add_u32 v{4+i}, v9, 4, v10")
a("s_waitcnt lgkmcnt(0)")
for i in range(3):
    if i == 2: a("s_mov_b64 exec, 0xffffffff")
    a(f"buffer_store_dwordx4 {vr(120+4*i,4)}, v{4+i}, s[{SOUT}:{SOUT+3}], s72 offen")
a("s_mov_b64 exec, -1")
if TS:
    a("s_waitcnt vmcnt(0)")
    stamp()
    a("s_waitcnt lgkmcnt(0)")
    n = nts[0]
    for i in range(n): a(f"v_mov_b32 v{16+i}, s{sTS+2*i}")
    a(f"s_lshl_b32 s{sT}, s2, 2"); a(f"s_add_u32 s{sT}, s{sT}, s{sWAVE}"); a(f"s_lshl_b32 s{sT}, s{sT}, 6"); a(f"s_add_u32 s{sT}, s{sT}, {WS_TS}")
    a("v_mov_b32 v2, 0"); a("s_mov_b64 exec, 1")
    for i in range(0, 12, 4): a(f"buffer_store_dwordx4 {vr(16+i,4)}, v2, s[{SWS}:{SWS+3}], s{sT} offen offset:{4*i}")
a.label("L_end"); a("s_endpgm")
a.label("L_code_end")

hdr = open("cdna_kernels/" + NAME + ".s.ref").read().split("\n")
hdr = [l for l in hdr if l.startswith(";") and "@launch" not in l and "Override" not in l and "grid=ceil" not in l]
src = header(hdr + [f"; @launch grid=(256,1,1) block=(256,1,1) lds={LDS_SIZE}"]) + kernel_open(K) + a.text() + RODATA + descriptor(K)
open(OUT, "w").write(src)
```
